```python
import torch

def _softmax(x, axis=-1):
    return torch.softmax(x, dim=axis)
def _gelu(x):
    return torch.nn.functional.gelu(x, approximate="tanh")
def _silu(x):
    return torch.nn.functional.silu(x)
def _sigmoid(x):
    return torch.sigmoid(x)
def _layernorm(x, axis=-1, eps=1e-5):
    m = x.mean(dim=axis, keepdim=True)
    v = x.var(dim=axis, keepdim=True, unbiased=False)
    return (x - m) / torch.sqrt(v + eps)
def _scatter_add(tgt, idx, src, axis=0):
    return tgt.clone().index_add_(axis, idx, src)
def _segment_sum(src, seg, n):
    out = torch.zeros((n,) + src.shape[1:], dtype=src.dtype)
    return out.index_add_(0, seg, src)
def _pad(x, pw):
    flat = tuple(v for pair in reversed(pw) for v in pair)
    return torch.nn.functional.pad(x, flat)

kernel_name = 'sequential_preLN__spectral_gfnet__geglu_ffn__prompt'

def setup_inputs():

    _w = (lambda a: (lambda t: t.to(torch.bfloat16) if t.is_floating_point() else t)(torch.as_tensor(a)))
    def _A_setup():
        B, S, D = 1, 2048, 640
        Df = D // 2 + 1
        return {
            "x": _w((lambda *s: torch.randn(*s, dtype=torch.bfloat16) * 0.05)(B, S, D)),
            "w_r": _w((lambda *s: torch.randn(*s, dtype=torch.bfloat16) * 0.4)(S, Df) * 0.02),
            "w_i": _w((lambda *s: torch.randn(*s, dtype=torch.bfloat16) * 0.4)(S, Df) * 0.02),
        }
    _A_in = _A_setup()

    def _B_setup():
        B, S, D, F = 1, 2048, 640, 1728
        return {
            "x": _w((lambda *s: torch.randn(*s, dtype=torch.bfloat16) * 0.05)(B, S, D)),
            "w_gate": _w((lambda *s: torch.randn(*s, dtype=torch.bfloat16) * 0.05)(D, F)),
            "w_up": _w((lambda *s: torch.randn(*s, dtype=torch.bfloat16) * 0.05)(D, F)),
            "w_down": _w((lambda *s: torch.randn(*s, dtype=torch.bfloat16) * 0.05)(F, D)),
        }
    _B_in = _B_setup()

    return {
        "A_x": _A_in["x"],
        "A_w_r": _A_in["w_r"],
        "A_w_i": _A_in["w_i"],
        "B_x": _B_in["x"],
        "B_w_gate": _B_in["w_gate"],
        "B_w_up": _B_in["w_up"],
        "B_w_down": _B_in["w_down"],
    }

def reference(A_x, A_w_r, A_w_i, B_x, B_w_gate, B_w_up, B_w_down):
    def _A_ref(x, w_r, w_i):
        B, S, D = x.shape
        X = (lambda x, axes=(-2,-1): torch.fft.rfft2(x.float(), dim=axes))(x, axes=(-2, -1))
        W = w_r + 1j * w_i
        X = X * W
        y = (lambda x, s, axes=(-2,-1): torch.fft.irfft2(x, s=s, dim=axes).to(torch.bfloat16))(X, (S, D), axes=(-2, -1))
        return y

    def _B_ref(x, w_gate, w_up, w_down):
        return (_gelu(x @ w_gate) * (x @ w_up)) @ w_down

    x = A_x
    h = x + _A_ref(_layernorm(x, axis=-1), A_w_r, A_w_i)
    h2 = h + _B_ref(_layernorm(h, axis=-1), B_w_gate, B_w_up, B_w_down)
    return h2
```

```python
import re, struct

TRANS = ('v_exp_f32', 'v_log_f32', 'v_rcp_f32', 'v_rsq_f32', 'v_sqrt_f32', 'v_sin_f32', 'v_cos_f32')
REG_RE = re.compile(r'^(-|abs\()?\s*([vas])(?:\[(\d+):(\d+)\]|(\d+))\)?$')

def f2u(x):
    return struct.unpack('<I', struct.pack('<f', x))[0]

def fhex(x):
    return '0x%08x' % f2u(x)

def parse_reg(tok):
    tok = tok.strip()
    if tok in ('vcc', 'exec', 'm0', 'scc'):
        return {(tok, 0)}
    if tok in ('vcc_lo', 'vcc_hi'):
        return {('vcc', 0)}
    m = REG_RE.match(tok)
    if not m:
        return set()
    kind = m.group(2)
    if m.group(3) is not None:
        lo, hi = int(m.group(3)), int(m.group(4))
    else:
        lo = hi = int(m.group(5))
    return {(kind, i) for i in range(lo, hi + 1)}

def split_ops(s):
    out, depth, cur = [], 0, ''
    for ch in s:
        if ch == '[': depth += 1
        if ch == ']': depth -= 1
        if ch == ',' and depth == 0:
            out.append(cur.strip()); cur = ''
        else:
            cur += ch
    if cur.strip():
        out.append(cur.strip())
    return out

class Ins:
    def __init__(self, text):
        self.text = text
        t = text.split(';')[0].strip()
        parts = t.split(None, 1)
        self.mn = parts[0]
        rest = parts[1] if len(parts) > 1 else ''
        ops = split_ops(rest)
        self.mods = ''
        if ops:
            lp = ops[-1].split(None, 1)
            ops[-1] = lp[0]
            if len(lp) > 1:
                self.mods = lp[1]
        self.ops = ops
        mn = self.mn
        self.is_mfma = mn.startswith('v_mfma')
        self.is_valu = mn.startswith('v_') and not self.is_mfma
        self.is_trans = any(mn.startswith(x) for x in TRANS)
        self.is_vmem = mn.startswith('buffer_') or mn.startswith('global_')
        self.is_ds = mn.startswith('ds_')
        self.is_salu = mn.startswith('s_')
        self.is_dpp = 'dpp' in mn or 'quad_perm' in self.mods or 'row_' in self.mods
        self.is_lds_dma = self.is_vmem and (re.search(r'\blds\b', self.mods) is not None or 'load_lds' in mn)
        self.states = 1
        if mn == 's_nop':
            self.states = int(ops[0], 0) + 1
        R = [parse_reg(o) for o in ops]
        self.w = set(); self.r = set()
        self.srcA = set(); self.srcC = set()
        self.passes = 0
        if self.is_mfma:
            self.w = R[0]; self.srcA = R[1] | R[2]; self.srcC = R[3]; self.r = R[1] | R[2] | R[3]
            self.passes = 4 if '16x16x32' in mn else 8
        elif self.is_valu:
            if mn.startswith('v_permlane') and 'swap' in mn:
                self.w = R[0] | R[1]; self.r = R[0] | R[1]
            elif mn.startswith('v_cmp'):
                self.w = R[0];
                for x in R[1:]: self.r |= x
            elif re.match(r'v_(add|sub|subrev|addc|subb)_co', mn):
                self.w = R[0] | R[1]
                for x in R[2:]: self.r |= x
            else:
                self.w = R[0]
                for x in R[1:]: self.r |= x
                if mn.startswith('v_fmac') or mn.startswith('v_writelane') or 'sdwa' in mn or mn.startswith('v_pk_fmac'):
                    self.r |= R[0]
        elif self.is_vmem:
            if 'store' in mn:
                for x in R: self.r |= x
            elif self.is_lds_dma:
                for x in R: self.r |= x
                self.r |= {('m0', 0)}
            else:
                self.w = R[0]
                for x in R[1:]: self.r |= x
                if 'd16' in mn: self.r |= R[0]
        elif self.is_ds:
            if mn.startswith('ds_read') or mn.startswith('ds_bpermute') or mn.startswith('ds_swizzle'):
                self.w = R[0]
                for x in R[1:]: self.r |= x
            else:
                for x in R: self.r |= x
        elif self.is_salu:
            if mn.startswith('s_cmp') or mn.startswith('s_cbranch') or mn in ('s_nop', 's_waitcnt', 's_barrier', 's_endpgm', 's_branch', 's_setprio'):
                for x in R: self.r |= x
            else:
                if R: self.w = R[0]
                for x in R[1:]: self.r |= x
        self.wide_store = self.is_vmem and 'store' in mn and ('x4' in mn or 'x3' in mn)
        self.store_data = R[0] if self.wide_store else set()

def vonly(s):
    return {x for x in s if x[0] in 'va'}
def sonly(s):
    return {x for x in s if x[0] in ('s', 'vcc')}

def need(p, c):
    n = 0
    if p.is_valu:
        wv = vonly(p.w); ws = sonly(p.w)
        if c.is_mfma and wv & c.r: n = max(n, 2)
        if p.is_trans and c.is_valu and not c.is_trans and wv & c.r: n = max(n, 1)
        if p.is_trans and c.is_mfma and wv & c.r: n = max(n, 2)
        if c.is_valu and c.is_dpp and wv & c.r: n = max(n, 2)
        if c.is_valu and (c.mn.startswith('v_readlane') or c.mn.startswith('v_readfirstlane')) and wv & c.r: n = max(n, 1)
        if c.is_valu and c.mn.startswith('v_permlane') and wv & c.r: n = max(n, 2)
        if ws:
            if c.is_valu and ws & c.r:
                n = max(n, 4 if (c.mn.startswith('v_readlane') or c.mn.startswith('v_writelane')) else 2)
            if c.is_valu and c.mn.startswith('v_cndmask') and ('vcc', 0) in ws: n = max(n, 2)
            if c.is_vmem and ws & c.r: n = max(n, 5)
        if 'sdwa' in p.mn or 'op_sel' in p.mods:
            if c.is_valu and wv & (c.r | c.w): n = max(n, 1)
        if ('exec', 0) in p.w:
            n = max(n, 5)
    if p.is_mfma:
        big = 8 if p.passes == 4 else 12
        if c.is_mfma:
            if p.w & c.srcA: n = max(n, big)
            if p.w & c.srcC:
                if p.w == c.srcC and p.passes == c.passes: pass
                else: n = max(n, big - 2)
            elif p.w & c.w: n = max(n, big)
        else:
            if p.w & (c.r | c.w): n = max(n, big)
            if c.is_valu and p.srcC & c.w: n = max(n, 3 if p.passes == 4 else 7)
    if p.wide_store and (p.store_data & c.w):
        n = max(n, 2)
    if p.is_salu and ('m0', 0) in p.w and c.is_lds_dma: n = max(n, 1)
    return n

class Kern:
    def __init__(self, name):
        self.name = name
        self.lines = []
        self.hist = []
        self.vnext = 1
        self.snext = 4
        self.vmax = 1
        self.all = []
    def valloc(self, n, align=1):
        b = (self.vnext + align - 1) // align * align
        self.vnext = b + n
        self.vmax = max(self.vmax, self.vnext)
        assert self.vnext <= 256, 'out of vgprs %d' % self.vnext
        return b
    def salloc(self, n, align=1):
        b = (self.snext + align - 1) // align * align
        self.snext = b + n
        assert self.snext <= 100
        return b
    def raw(self, text):
        self.lines.append(text)
    def comment(self, t):
        self.lines.append('    ; ' + t)
    def label(self, l):
        self.lines.append(l + ':')
        self.all.append(('label', l))
    def fence(self):
        self.e('s_nop 7'); self.e('s_nop 7')
    def e(self, text):
        ins = Ins(text)
        req = 0
        dist = 0
        for p in reversed(self.hist):
            n = need(p, ins)
            if n > dist:
                req = max(req, n - dist)
            dist += p.states
            if dist > 24: break
        while req > 0:
            k = min(req, 16)
            nop = Ins('s_nop %d' % (k - 1))
            self.lines.append('    s_nop %d' % (k - 1))
            self.hist.append(nop); self.all.append(('ins', nop))
            req -= k
        self.lines.append('    ' + text)
        self.hist.append(ins); self.all.append(('ins', ins))
        if len(self.hist) > 64: self.hist = self.hist[-40:]
        for x in ins.w | ins.r:
            if x[0] == 'v': self.vmax = max(self.vmax, x[1] + 1)
        return ins
    def check_loop(self, lab):
        idx = max(i for i, x in enumerate(self.all) if x == ('label', lab))
        body = [x[1] for x in self.all[idx + 1:] if x[0] == 'ins']
        tail = body[-40:]
        head = body[:40]
        seq = tail + head
        for j in range(len(tail), len(seq)):
            dist = 0
            for i in range(j - 1, -1, -1):
                if i < len(tail):
                    n = need(seq[i], seq[j])
                    assert n <= dist, 'loop hazard %s -> %s need %d have %d' % (seq[i].text, seq[j].text, n, dist)
                dist += seq[i].states
                if dist > 24: break
    def text(self, nsgpr=None, agprs=0):
        nv = self.vmax
        acc = (nv + 3) // 4 * 4
        tot = acc + agprs if agprs else nv
        s = '.globl %s\n.p2align 8\n.type %s,@function\n%s:\n' % (self.name, self.name, self.name)
        s += '\n'.join(self.lines) + '\n'
        kd = '''.amdhsa_kernel %s
  .amdhsa_next_free_vgpr %d
  .amdhsa_next_free_sgpr %d
  .amdhsa_accum_offset %d
  .amdhsa_group_segment_fixed_size 0
  .amdhsa_kernarg_size 80
  .amdhsa_user_sgpr_count 2
  .amdhsa_user_sgpr_kernarg_segment_ptr 1
  .amdhsa_system_sgpr_workgroup_id_x 1
.end_amdhsa_kernel
''' % (self.name, tot, nsgpr or max(self.snext, 16), acc)
        return s, kd

def V(b, n=1):
    return 'v%d' % b if n == 1 else 'v[%d:%d]' % (b, b + n - 1)
def S(b, n=1):
    return 's%d' % b if n == 1 else 's[%d:%d]' % (b, b + n - 1)
```

```python
from asmlib import *

T1_OFF = 0x000000
WT_OFF = 0x300000
T2_OFF = 0x600000
H_OFF  = 0x900000
L2_OFF = 0xC00000
ACT_OFF = 0x1000000
COLSZ = 321 * 8192
ROWSZ = 2048 * 1280
ACTSZ = 2048 * 1728 * 2
BIG = '0x80000000'

def srd(k, sb, ptr, off, size):
    if off:
        k.e('s_add_u32 s%d, s%d, 0x%x' % (sb, ptr, off))
        k.e('s_addc_u32 s%d, s%d, 0' % (sb + 1, ptr + 1))
    else:
        k.e('s_mov_b32 s%d, s%d' % (sb, ptr))
        k.e('s_mov_b32 s%d, s%d' % (sb + 1, ptr + 1))
    k.e('s_mov_b32 s%d, 0x%x' % (sb + 2, size))
    k.e('s_mov_b32 s%d, 0x00020000' % (sb + 3))

def angle(k, dst, va, c, vbase):
    if c == 0:
        k.e('v_mov_b32 v%d, v%d' % (dst, vbase))
    else:
        k.e('v_fmamk_f32 v%d, v%d, %s, v%d' % (dst, va, fhex(float(c)), vbase))

def allreduce4(k, a, b, c, d, sdst):
    k.e('v_permlane32_swap_b32 v%d, v%d' % (a, b))
    k.e('v_permlane32_swap_b32 v%d, v%d' % (c, d))
    k.e('v_add_f32 v%d, v%d, v%d' % (a, a, b))
    k.e('v_add_f32 v%d, v%d, v%d' % (c, c, d))
    k.e('v_permlane16_swap_b32 v%d, v%d' % (a, c))
    k.e('v_add_f32 v%d, v%d, v%d' % (a, a, c))
    for m in ('quad_perm:[1,0,3,2]', 'quad_perm:[2,3,0,1]', 'row_half_mirror', 'row_mirror'):
        k.e('v_add_f32_dpp v%d, v%d, v%d %s row_mask:0xf bank_mask:0xf' % (a, a, a, m))
    k.e('v_readlane_b32 s%d, v%d, 0' % (sdst + 0, a))
    k.e('v_readlane_b32 s%d, v%d, 32' % (sdst + 1, a))
    k.e('v_readlane_b32 s%d, v%d, 16' % (sdst + 2, a))
    k.e('v_readlane_b32 s%d, v%d, 48' % (sdst + 3, a))

def ln_stats(k, ssum, ssq, vm, vr, t0, t1):
    k.e('v_mul_f32 v%d, %s, s%d' % (t0, fhex(1.0 / 640), ssum) if False else 'v_mov_b32 v%d, s%d' % (t0, ssum))
    k.e('v_mov_b32 v%d, s%d' % (t1, ssq))
    k.e('v_mul_f32 v%d, %s, v%d' % (t0, fhex(1.0 / 640), t0))
    k.e('v_mul_f32 v%d, %s, v%d' % (t1, fhex(1.0 / 640), t1))
    k.e('v_fma_f32 v%d, -v%d, v%d, v%d' % (t1, t0, t0, t1))
    k.e('v_cvt_pk_bf16_f32 v%d, v%d, v%d' % (t0, t0, t1))
    k.e('v_lshlrev_b32 v%d, 16, v%d' % (vm, t0))
    k.e('v_and_b32 v%d, 0xffff0000, v%d' % (t1, t0))
    k.e('v_add_f32 v%d, %s, v%d' % (t1, fhex(1e-5), t1))
    k.e('v_cvt_pk_bf16_f32 v%d, v%d, v%d' % (t1, t1, t1))
    k.e('v_and_b32 v%d, 0xffff0000, v%d' % (t1, t1))
    k.e('v_sqrt_f32 v%d, v%d' % (t0, t1))
    k.e('v_cvt_pk_bf16_f32 v%d, v%d, v%d' % (t0, t0, t0))
    k.e('v_and_b32 v%d, 0xffff0000, v%d' % (t0, t0))
    k.e('v_rcp_f32 v%d, v%d' % (vr, t0))
    k.e('v_fma_f32 v%d, -v%d, v%d, 2.0' % (t1, t0, vr))
    k.e('v_mul_f32 v%d, v%d, v%d' % (vr, vr, t1))

def ln_pair(k, dst, x0, x1, vm, vr, t0, t1):
    k.e('v_sub_f32 v%d, v%d, v%d' % (t0, x0, vm))
    k.e('v_sub_f32 v%d, v%d, v%d' % (t1, x1, vm))
    k.e('v_cvt_pk_bf16_f32 v%d, v%d, v%d' % (t1, t0, t1))
    k.e('v_lshlrev_b32 v%d, 16, v%d' % (t0, t1))
    k.e('v_and_b32 v%d, 0xffff0000, v%d' % (t1, t1))
    k.e('v_mul_f32 v%d, v%d, v%d' % (t0, t0, vr))
    k.e('v_mul_f32 v%d, v%d, v%d' % (t1, t1, vr))
    k.e('v_cvt_pk_bf16_f32 v%d, v%d, v%d' % (dst, t0, t1))
```

```python
from gen_common import *

NWG1 = 256
NWT = 161

def gen_k1():
    k = Kern('k1_kernel')
    e = k.e
    k.snext = 40
    e('s_load_dwordx2 s[4:5], s[0:1], 0')
    e('s_load_dwordx4 s[8:11], s[0:1], 8')
    e('s_load_dwordx2 s[6:7], s[0:1], 72')
    e('s_cmp_ge_u32 s2, %d' % (NWG1 + NWT))
    e('s_cbranch_scc1 k1_end')
    e('s_cmp_ge_u32 s2, %d' % NWG1)
    e('s_cbranch_scc1 k1_tr')
    va = k.valloc
    vl = va(1); vi = va(1); vh = va(1); voff = va(1); vt = va(1)
    X = [va(16, 4), va(16, 4)]
    e('v_lshrrev_b32 v%d, 6, v0' % vt)
    e('v_and_b32 v%d, 63, v0' % vl)
    e('v_readfirstlane_b32 s20, v%d' % vt)
    e('v_and_b32 v%d, 31, v0' % vi)
    e('v_bfe_u32 v%d, v0, 5, 1' % vh)
    e('s_and_b32 s21, s2, 7'); e('s_lshl_b32 s21, s21, 5'); e('s_lshr_b32 s22, s2, 3'); e('s_add_u32 s21, s21, s22')
    e('s_lshr_b32 s22, s21, 3')
    e('s_and_b32 s23, s21, 7')
    e('s_lshl_b32 s23, s23, 3'); e('s_lshl_b32 s24, s20, 1'); e('s_add_u32 s23, s23, s24')
    e('s_lshl_b32 s23, s23, 5'); e('s_add_u32 s23, s23, s22')
    e('s_mul_i32 s24, s23, 1280')
    e('s_add_u32 s25, s24, 40960')
    e('v_mul_u32_u24 v%d, 160, v%d' % (voff, vh))
    e('v_add_lshl_u32 v%d, v%d, v%d, 1' % (voff, voff, vi))
    e('v_mov_b32 v%d, %s' % (vt, BIG))
    e('v_cmp_gt_u32 vcc, 20, v%d' % vi)
    e('v_cndmask_b32 v%d, v%d, v%d, vcc' % (voff, vt, voff))
    for r in range(2):
        for t in range(16):
            e('v_mov_b32 v%d, 0' % (X[r] + t))
    e('s_waitcnt lgkmcnt(0)')
    srd(k, 12, 4, 0, ROWSZ)
    srd(k, 16, 6, T1_OFF, COLSZ)
    for r in range(2):
        for t in range(16):
            e('buffer_load_short_d16_hi v%d, v%d, s[12:15], s%d offen offset:%d' % (X[r] + t, voff, 24 + r, 40 * t if t < 8 else 40 * (16 + t - 8)))
    vif = va(1); vhf = va(1); a1 = va(1); b1 = va(1); t0 = va(1); t1 = va(1); t2 = va(1); t3 = va(1)
    Bc = va(8, 4); Bs = va(8, 4); M3 = va(12, 4); tc = va(12); ts = va(12)
    e('v_cvt_f32_u32 v%d, v%d' % (vif, vi))
    e('v_cvt_f32_u32 v%d, v%d' % (vhf, vh))
    e('v_mul_f32 v%d, %s, v%d' % (a1, fhex(1 / 32), vif))
    e('v_mul_f32 v%d, v%d, v%d' % (b1, a1, vhf))
    e('v_mul_f32 v%d, 8.0, v%d' % (b1, b1) if False else 'v_mul_f32 v%d, %s, v%d' % (b1, fhex(8.0), b1))
    for ks in range(2):
        for p in range(4):
            angle(k, t0, a1, 16 * ks + 2 * p, b1)
            angle(k, t1, a1, 16 * ks + 2 * p + 1, b1)
            e('v_cos_f32 v%d, v%d' % (t2, t0)); e('v_cos_f32 v%d, v%d' % (t3, t1))
            e('v_sin_f32 v%d, v%d' % (t0, t0)); e('v_sin_f32 v%d, v%d' % (t1, t1))
            e('v_cvt_pk_bf16_f32 v%d, v%d, v%d' % (Bc + 4 * ks + p, t2, t3))
            e('v_cvt_pk_bf16_f32 v%d, -v%d, -v%d' % (Bs + 4 * ks + p, t0, t1))
    e('v_mul_f32 v%d, %s, v%d' % (a1, fhex(1 / 640), vif))
    e('v_mul_f32 v%d, v%d, v%d' % (b1, a1, vhf))
    e('v_mul_f32 v%d, 4.0, v%d' % (b1, b1))
    for r in range(12):
        angle(k, t0, a1, (r & 3) + 8 * (r >> 2), b1)
        e('v_cos_f32 v%d, v%d' % (tc + r, t0)); e('v_sin_f32 v%d, v%d' % (ts + r, t0))
    e('v_lshrrev_b32 v%d, 1, v%d' % (t0, vi)); e('v_cvt_f32_u32 v%d, v%d' % (t0, t0))
    e('v_mul_f32 v%d, %s, v%d' % (a1, fhex(1 / 20), t0))
    e('v_and_b32 v%d, 1, v%d' % (t0, vi)); e('v_cvt_f32_u32 v%d, v%d' % (t0, t0))
    e('v_mul_f32 v%d, v%d, v%d' % (b1, a1, vhf))
    e('v_mul_f32 v%d, 4.0, v%d' % (b1, b1))
    e('v_fmac_f32 v%d, %s, v%d' % (b1, fhex(0.25), t0))
    for p in range(4):
        d0 = ((2 * p) & 3) + 8 * ((2 * p) >> 2)
        angle(k, t0, a1, d0, b1); angle(k, t1, a1, d0 + 1, b1)
        e('v_cos_f32 v%d, v%d' % (t2, t0)); e('v_cos_f32 v%d, v%d' % (t3, t1))
        e('v_sin_f32 v%d, v%d' % (t0, t0)); e('v_sin_f32 v%d, v%d' % (t1, t1))
        e('v_cvt_pk_bf16_f32 v%d, v%d, v%d' % (M3 + p, t2, t3))
        e('v_cvt_pk_bf16_f32 v%d, v%d, v%d' % (M3 + 4 + p, t0, t1))
    e('v_cmp_eq_u32 vcc, 0, v%d' % vh)
    for p in range(2):
        angle(k, t0, a1, 16 + 2 * p, b1); angle(k, t1, a1, 17 + 2 * p, b1)
        e('v_cos_f32 v%d, v%d' % (t2, t0)); e('v_cos_f32 v%d, v%d' % (t3, t1))
        e('v_sin_f32 v%d, v%d' % (t0, t0)); e('v_sin_f32 v%d, v%d' % (t1, t1))
        e('v_cvt_pk_bf16_f32 v%d, v%d, v%d' % (t2, t2, t3))
        e('v_cvt_pk_bf16_f32 v%d, v%d, v%d' % (t0, t0, t1))
        e('v_cndmask_b32 v%d, 0, v%d, vcc' % (M3 + 8 + p, t2))
        e('v_cndmask_b32 v%d, 0, v%d, vcc' % (M3 + 10 + p, t0))
    vlw = va(1); vlr = va(1); vgo = va(1)
    e('v_lshlrev_b32 v%d, 6, v%d' % (t0, vh)); e('v_add_lshl_u32 v%d, v%d, v%d, 5' % (vlw, t0, vi))
    e('s_lshl_b32 s26, s20, 3')
    e('v_add_u32 v%d, s26, v%d' % (vlw, vlw))
    e('v_lshlrev_b32 v%d, 4, v0' % vlr)
    e('v_lshrrev_b32 v%d, 1, v0' % t0); e('v_lshlrev_b32 v%d, 13, v%d' % (t0, t0))
    e('v_and_b32 v%d, 1, v0' % t1); e('v_lshl_add_u32 v%d, v%d, 4, v%d' % (vgo, t1, t0))
    e('s_lshl_b32 s27, s21, 5'); e('s_add_u32 s28, s27, 0x100000'); e('s_add_u32 s29, s27, 0x200000')
    st = va(4)
    e('s_waitcnt vmcnt(16)')
    for r in range(2):
        if r == 1: e('s_waitcnt vmcnt(0)')
        e('v_add_f32 v%d, v%d, v%d' % (st + 2 * r, X[r], X[r] + 1))
        e('v_mul_f32 v%d, v%d, v%d' % (st + 2 * r + 1, X[r], X[r]))
        e('v_fmac_f32 v%d, v%d, v%d' % (st + 2 * r + 1, X[r] + 1, X[r] + 1))
        for t in range(2, 16):
            e('v_add_f32 v%d, v%d, v%d' % (st + 2 * r, st + 2 * r, X[r] + t))
            e('v_fmac_f32 v%d, v%d, v%d' % (st + 2 * r + 1, X[r] + t, X[r] + t))
    allreduce4(k, st, st + 1, st + 2, st + 3, 30)
    vm = va(2); vr = va(2)
    for r in range(2):
        ln_stats(k, 30 + 2 * r, 31 + 2 * r, vm + r, vr + r, t0, t1)
    A = [va(8, 4), va(8, 4)]
    Dre = [va(16, 4), va(16, 4)]; Dim = [va(16, 4), va(16, 4)]
    for r in range(2):
        for p in range(8):
            ln_pair(k, A[r] + p, X[r] + 2 * p, X[r] + 2 * p + 1, vm + r, vr + r, t0, t1)
        for ks in range(2):
            e('v_mfma_f32_32x32x16_bf16 %s, %s, %s, %s' % (V(Dre[r], 16), V(A[r] + 4 * ks, 4), V(Bc + 4 * ks, 4), '0' if ks == 0 else V(Dre[r], 16)))
            e('v_mfma_f32_32x32x16_bf16 %s, %s, %s, %s' % (V(Dim[r], 16), V(A[r] + 4 * ks, 4), V(Bs + 4 * ks, 4), '0' if ks == 0 else V(Dim[r], 16)))
    SL = X
    D2 = [va(16, 4), va(16, 4)]
    PK = A[0]
    u0 = va(1); u1 = va(1)
    for r in range(2):
        for p in range(6):
            for z, (dr, di) in enumerate(((t0, t1), (t2, t3))):
                q = 2 * p + z
                e('v_mul_f32 v%d, v%d, v%d' % (dr, Dre[r] + q, tc + q))
                e('v_mul_f32 v%d, v%d, v%d' % (di, Dim[r] + q, tc + q))
                e('v_fmac_f32 v%d, v%d, v%d' % (dr, Dim[r] + q, ts + q))
                e('v_fma_f32 v%d, -v%d, v%d, v%d' % (di, Dre[r] + q, ts + q, di))
            if p < 4: dre, dim = SL[r] + p, SL[r] + 4 + p
            else: dre, dim = SL[r] + 8 + (p - 4), SL[r] + 10 + (p - 4)
            e('v_cvt_pk_bf16_f32 v%d, v%d, v%d' % (dre, t0, t2))
            e('v_cvt_pk_bf16_f32 v%d, v%d, v%d' % (dim, t1, t3))
        for s in range(3):
            e('v_mfma_f32_32x32x16_bf16 %s, %s, %s, %s' % (V(D2[r], 16), V(M3 + 4 * s, 4), V(SL[r] + 4 * s, 4), '0' if s == 0 else V(D2[r], 16)))
    for r in range(2):
        for p in range(6):
            e('v_cvt_pk_bf16_f32 v%d, v%d, v%d' % (PK + 2 * p + r, D2[r] + 2 * p, D2[r] + 2 * p + 1))
    for p in range(6):
        e('ds_write_b64 v%d, %s offset:%d' % (vlw, V(PK + 2 * p, 2), ((p & 1) + 4 * (p >> 1)) * 1024))
    e('s_waitcnt lgkmcnt(0)')
    e('s_barrier')
    O = Dre[0]
    for it in range(3):
        e('ds_read_b128 %s, v%d offset:%d' % (V(O + 4 * it, 4), vlr, 4096 * it))
    for it in range(3):
        e('s_waitcnt lgkmcnt(%d)' % (2 - it))
        e('buffer_store_dwordx4 %s, v%d, s[16:19], s%d offen' % (V(O + 4 * it, 4), vgo, 27 + it))
    e('s_endpgm')
    k.label('k1_tr')
    k.hist = []
    g = 1; kk = 2; gid = 3; q0 = 4; q1 = 5; vsrc = 6; vdst = 7; R = 8
    e('s_sub_u32 s20, s2, %d' % NWG1)
    e('s_lshl_b32 s20, s20, 8')
    e('v_add_u32 v%d, s20, v0' % gid)
    M = (1 << 32) // 321 + 1
    for x in range(0, 41216):
        assert (x * M) >> 32 == x // 321
    e('s_mov_b32 s21, 0x%x' % M)
    e('v_mul_hi_u32 v%d, v%d, s21' % (g, gid))
    e('v_mul_u32_u24 v%d, 321, v%d' % (q0, g) if False else 's_movk_i32 s22, 321')
    e('v_mul_u32_u24 v%d, s22, v%d' % (q0, g))
    e('v_sub_u32 v%d, v%d, v%d' % (kk, gid, q0))
    e('v_lshrrev_b32 v%d, 4, v%d' % (q0, g))
    e('v_and_b32 v%d, 15, v%d' % (q1, g))
    e('v_lshlrev_b32 v%d, 8, v%d' % (vsrc, q0))
    e('v_lshl_add_u32 v%d, v%d, 2, v%d' % (vsrc, q1, vsrc))
    e('v_mul_u32_u24 v%d, s22, v%d' % (vsrc, vsrc))
    e('v_add_lshl_u32 v%d, v%d, v%d, 1' % (vsrc, vsrc, kk))
    e('v_lshrrev_b32 v%d, 2, v%d' % (vdst, q1))
    e('v_lshl_add_u32 v%d, v%d, 3, v%d' % (vdst, vdst, q0))
    e('v_lshlrev_b32 v%d, 8, v%d' % (vdst, vdst))
    e('v_and_b32 v%d, 3, v%d' % (q1, q1))
    e('v_lshl_add_u32 v%d, v%d, 6, v%d' % (vdst, q1, vdst))
    e('v_lshl_add_u32 v%d, v%d, 13, v%d' % (vdst, kk, vdst))
    e('v_mov_b32 v%d, %s' % (q0, BIG))
    e('v_cmp_gt_u32 vcc, 128, v%d' % g)
    e('v_cndmask_b32 v%d, v%d, v%d, vcc' % (vdst, q0, vdst))
    e('v_cndmask_b32 v%d, v%d, v%d, vcc' % (vsrc, q0, vsrc))
    e('s_mov_b32 s24, 0'); e('s_mov_b32 s25, 41088'); e('s_mov_b32 s26, %d' % (2 * 41088)); e('s_mov_b32 s27, %d' % (3 * 41088))
    e('s_waitcnt lgkmcnt(0)')
    srd(k, 12, 8, 0, 2048 * 642)
    srd(k, 16, 10, 0, 2048 * 642)
    srd(k, 28, 6, WT_OFF, COLSZ)
    R2 = R + 16
    for nn in range(4):
        for r in range(4):
            e('buffer_load_ushort v%d, v%d, s[12:15], s%d offen offset:%d' % (R + 4 * nn + r, vsrc, 24 + r, 642 * nn))
            e('buffer_load_ushort v%d, v%d, s[16:19], s%d offen offset:%d' % (R2 + 4 * nn + r, vsrc, 24 + r, 642 * nn))
    for nn in range(4):
        e('s_waitcnt vmcnt(%d)' % (24 - 8 * nn + nn))
        for r in range(4):
            e('v_lshl_or_b32 v%d, v%d, 16, v%d' % (R + 4 * nn + r, R2 + 4 * nn + r, R + 4 * nn + r))
        e('buffer_store_dwordx4 %s, v%d, s[28:31], 0 offen offset:%d' % (V(R + 4 * nn, 4), vdst, 16 * nn))
    k.label('k1_end')
    e('s_endpgm')
    return k, NWG1 + NWT, 256, 12288
```

```python
from gen_common import *

def gen_k2():
    k = Kern('k2_kernel')
    e = k.e
    k.snext = 40
    va = k.valloc
    e('s_load_dwordx2 s[6:7], s[0:1], 72')
    e('s_cmp_ge_u32 s2, 321')
    e('s_cbranch_scc1 k2_end')
    vn = va(1); vq = va(1); vw = va(1); voa = va(1); vow = va(1); vt = va(1)
    A = va(32, 4)
    W = va(8, 4)
    e('v_and_b32 v%d, 15, v0' % vn)
    e('v_bfe_u32 v%d, v0, 4, 2' % vq)
    e('v_lshrrev_b32 v%d, 6, v0' % vw)
    e('v_lshlrev_b32 v%d, 4, v%d' % (vt, vq))
    e('v_lshl_add_u32 v%d, v%d, 8, v%d' % (voa, vn, vt))
    e('v_lshlrev_b32 v%d, 4, v%d' % (vt, vn))
    e('v_lshl_add_u32 v%d, v%d, 8, v%d' % (vt, vq, vt))
    e('v_lshl_add_u32 v%d, v%d, 11, v%d' % (vow, vw, vt))
    e('s_lshl_b32 s20, s2, 13')
    e('s_add_u32 s21, s20, 4096')
    e('s_waitcnt lgkmcnt(0)')
    srd(k, 12, 6, T1_OFF, COLSZ)
    srd(k, 16, 6, WT_OFF, COLSZ)
    srd(k, 24, 6, T2_OFF, COLSZ)
    for mt in range(2):
        for j in range(4):
            e('buffer_load_dwordx4 %s, v%d, s[12:15], s%d offen offset:%d' % (V(A + 16 * mt + 4 * j, 4), voa, 20 + mt, 64 * j))
    for tk in range(2):
        e('buffer_load_dwordx4 %s, v%d, s[16:19], s20 offen offset:%d' % (V(W + 4 * tk, 4), vow, 1024 * tk))
    e('s_mov_b32 s22, %s' % fhex(2.0 / (2048 * 640)))
    e('s_cmp_eq_u32 s2, 0'); e('s_cselect_b32 s22, %s, s22' % fhex(1.0 / (2048 * 640)))
    e('s_cmp_eq_u32 s2, 320'); e('s_cselect_b32 s22, %s, s22' % fhex(1.0 / (2048 * 640)))
    vkf = va(1); vqf = va(1); vnf = va(1); a1 = va(1); b1 = va(1); t0 = va(1); t1 = va(1); t2 = va(1); t3 = va(1)
    Bre = va(16, 4); Bim = va(16, 4); C = va(8, 4); Sn = va(8, 4); NS = va(8, 4); tc = va(8); ts = va(8)
    e('v_lshl_add_u32 v%d, v%d, 4, v%d' % (vt, vw, vn))
    e('v_cvt_f32_u32 v%d, v%d' % (vkf, vt))
    e('v_cvt_f32_u32 v%d, v%d' % (vqf, vq))
    e('v_cvt_f32_u32 v%d, v%d' % (vnf, vn))
    e('v_mul_f32 v%d, 4.0, v%d' % (vqf, vqf))
    e('v_mul_f32 v%d, %s, v%d' % (a1, fhex(1 / 64), vkf))
    e('v_mul_f32 v%d, v%d, v%d' % (b1, a1, vqf))
    for j in range(4):
        for u in range(4):
            angle(k, t0, a1, 16 * j + u, b1)
            e('v_cos_f32 v%d, v%d' % (t1, t0)); e('v_sin_f32 v%d, v%d' % (t2, t0))
            e('v_cvt_pk_bf16_f32 v%d, v%d, v%d' % (Bre + 4 * j + u, t1, t2))
            e('v_cvt_pk_bf16_f32 v%d, -v%d, v%d' % (Bim + 4 * j + u, t2, t1))
    e('v_mul_f32 v%d, %s, v%d' % (a1, fhex(1 / 2048), vkf))
    e('v_mul_f32 v%d, v%d, v%d' % (b1, a1, vqf))
    for t in range(8):
        angle(k, t0, a1, 16 * (t >> 2) + (t & 3), b1)
        e('v_cos_f32 v%d, v%d' % (tc + t, t0)); e('v_sin_f32 v%d, v%d' % (ts + t, t0))
    for tk in range(2):
        if tk == 0: e('v_mul_f32 v%d, %s, v%d' % (a1, fhex(1 / 32), vnf))
        else: e('v_add_f32 v%d, 0.5, v%d' % (a1, a1))
        e('v_mul_f32 v%d, v%d, v%d' % (b1, a1, vqf))
        for p in range(4):
            s0 = 16 * ((2 * p) >> 2) + ((2 * p) & 3)
            angle(k, t0, a1, s0, b1); angle(k, t1, a1, s0 + 1, b1)
            e('v_cos_f32 v%d, v%d' % (t2, t0)); e('v_cos_f32 v%d, v%d' % (t3, t1))
            e('v_sin_f32 v%d, v%d' % (t0, t0)); e('v_sin_f32 v%d, v%d' % (t1, t1))
            e('v_cvt_pk_bf16_f32 v%d, v%d, v%d' % (C + 4 * tk + p, t2, t3))
            e('v_cvt_pk_bf16_f32 v%d, v%d, v%d' % (Sn + 4 * tk + p, t0, t1))
            e('v_cvt_pk_bf16_f32 v%d, -v%d, -v%d' % (NS + 4 * tk + p, t0, t1))
    vlw = va(1); vlr = va(1); vgo = va(1)
    e('v_mul_u32_u24 v%d, 1088, v%d' % (t0, vq))
    e('v_lshl_add_u32 v%d, v%d, 2, v%d' % (vlw, vt, t0))
    e('v_mul_u32_u24 v%d, 272, v%d' % (t0, vn))
    e('v_lshl_add_u32 v%d, v%d, 4, v%d' % (vlr, vq, t0))
    e('v_lshlrev_b32 v%d, 5, v0' % vgo)
    D = va(16, 4)
    E = va(16, 4)
    P = va(8, 4)
    for mt in range(2):
        for j in range(4):
            e('s_waitcnt vmcnt(%d)' % (9 - 4 * mt - j))
            a = V(A + 16 * mt + 4 * j, 4)
            e('v_mfma_f32_16x16x32_bf16 %s, %s, %s, %s' % (V(D + 4 * mt, 4), a, V(Bre + 4 * j, 4), '0' if j == 0 else V(D + 4 * mt, 4)))
            e('v_mfma_f32_16x16x32_bf16 %s, %s, %s, %s' % (V(D + 8 + 4 * mt, 4), a, V(Bim + 4 * j, 4), '0' if j == 0 else V(D + 8 + 4 * mt, 4)))
    def twiddle_pair(src, p):
        for z, (dr, di) in enumerate(((t0, t1), (t2, t3))):
            q = 2 * p + z
            e('v_mul_f32 v%d, v%d, v%d' % (dr, src + q, tc + q))
            e('v_mul_f32 v%d, v%d, v%d' % (di, src + 8 + q, tc + q))
            e('v_fmac_f32 v%d, v%d, v%d' % (dr, src + 8 + q, ts + q))
            e('v_fma_f32 v%d, -v%d, v%d, v%d' % (di, src + q, ts + q, di))
    for p in range(4):
        twiddle_pair(D, p)
        e('v_cvt_pk_bf16_f32 v%d, v%d, v%d' % (P + p, t0, t2))
        e('v_cvt_pk_bf16_f32 v%d, v%d, v%d' % (P + 4 + p, t1, t3))
    def f32step(dst, src):
        for tk in range(2):
            e('v_mfma_f32_16x16x32_bf16 %s, %s, %s, 0' % (V(dst + 4 * tk, 4), V(C + 4 * tk, 4), V(src, 4)))
            e('v_mfma_f32_16x16x32_bf16 %s, %s, %s, 0' % (V(dst + 8 + 4 * tk, 4), V(C + 4 * tk, 4), V(src + 4, 4)))
        for tk in range(2):
            e('v_mfma_f32_16x16x32_bf16 %s, %s, %s, %s' % (V(dst + 4 * tk, 4), V(Sn + 4 * tk, 4), V(src + 4, 4), V(dst + 4 * tk, 4)))
            e('v_mfma_f32_16x16x32_bf16 %s, %s, %s, %s' % (V(dst + 8 + 4 * tk, 4), V(NS + 4 * tk, 4), V(src, 4), V(dst + 8 + 4 * tk, 4)))
    f32step(E, P)
    e('s_waitcnt vmcnt(0)')
    WR = A; WI = A + 8
    for t in range(8):
        e('v_lshlrev_b32 v%d, 16, v%d' % (WR + t, W + t))
        e('v_and_b32 v%d, 0xffff0000, v%d' % (WI + t, W + t))
        e('v_mul_f32 v%d, s22, v%d' % (WR + t, WR + t))
        e('v_mul_f32 v%d, s22, v%d' % (WI + t, WI + t))
    Y = va(8, 4)
    for p in range(4):
        for z, (dr, di) in enumerate(((t0, t1), (t2, t3))):
            q = 2 * p + z
            e('v_mul_f32 v%d, v%d, v%d' % (dr, E + q, WR + q))
            e('v_mul_f32 v%d, v%d, v%d' % (di, E + q, WI + q))
            e('v_fma_f32 v%d, -v%d, v%d, v%d' % (dr, E + 8 + q, WI + q, dr))
            e('v_fmac_f32 v%d, v%d, v%d' % (di, E + 8 + q, WR + q))
        e('v_cvt_pk_bf16_f32 v%d, v%d, v%d' % (Y + p, t0, t2))
        e('v_cvt_pk_bf16_f32 v%d, -v%d, -v%d' % (Y + 4 + p, t1, t3))
    f32step(D, Y)
    for p in range(4):
        twiddle_pair(D, p)
        e('v_cvt_pk_bf16_f32 v%d, v%d, v%d' % (P + 2 * p, t0, t1))
        e('v_cvt_pk_bf16_f32 v%d, v%d, v%d' % (P + 2 * p + 1, t2, t3))
        for z in range(2):
            t = 2 * p + z
            e('ds_write_b32 v%d, v%d offset:%d' % (vlw, P + t, (16 * (t >> 2) + (t & 3)) * 272))
    e('s_waitcnt lgkmcnt(0)')
    e('s_barrier')
    for nt in range(2):
        for j in range(4):
            e('ds_read_b128 %s, v%d offset:%d' % (V(A + 16 * nt + 4 * j, 4), vlr, 16 * 272 * nt + 64 * j))
    for nt in range(2):
        for j in range(4):
            e('s_waitcnt lgkmcnt(%d)' % (7 - 4 * nt - j))
            b = V(A + 16 * nt + 4 * j, 4)
            e('v_mfma_f32_16x16x32_bf16 %s, %s, %s, %s' % (V(E + 4 * nt, 4), V(Bre + 4 * j, 4), b, '0' if j == 0 else V(E + 4 * nt, 4)))
            e('v_mfma_f32_16x16x32_bf16 %s, %s, %s, %s' % (V(E + 8 + 4 * nt, 4), V(Bim + 4 * j, 4), b, '0' if j == 0 else V(E + 8 + 4 * nt, 4)))
    for nt in range(2):
        for r in range(4):
            e('v_cvt_pk_bf16_f32 v%d, v%d, -v%d' % (Y + 4 * nt + r, E + 4 * nt + r, E + 8 + 4 * nt + r))
        e('buffer_store_dwordx4 %s, v%d, s[24:27], s20 offen offset:%d' % (V(Y + 4 * nt, 4), vgo, 16 * nt))
    k.label('k2_end')
    e('s_endpgm')
    return k, 321, 256, 32 * 272
```

```python
from gen_common import *

def gen_k3():
    k = Kern('k3_kernel')
    e = k.e
    k.snext = 44
    va = k.valloc
    e('s_load_dwordx2 s[4:5], s[0:1], 0')
    e('s_load_dwordx2 s[6:7], s[0:1], 72')
    e('s_cmp_ge_u32 s2, 256')
    e('s_cbranch_scc1 k3_end')
    vi = va(1); vh = va(1); vt = va(1); vgo = va(1); vxo = va(1); vlw = va(1)
    t0 = va(1); t1 = va(1); t2 = va(1); t3 = va(1)
    G = va(12, 4)
    X = [va(8, 4), va(8, 4)]
    e('v_lshrrev_b32 v%d, 6, v0' % vt)
    e('v_and_b32 v%d, 31, v0' % vi)
    e('v_readfirstlane_b32 s20, v%d' % vt)
    e('v_bfe_u32 v%d, v0, 5, 1' % vh)
    e('s_and_b32 s21, s2, 7'); e('s_lshl_b32 s21, s21, 5'); e('s_lshr_b32 s22, s2, 3'); e('s_add_u32 s21, s21, s22')
    e('v_lshrrev_b32 v%d, 1, v0' % t0); e('v_lshlrev_b32 v%d, 13, v%d' % (t2, t0))
    e('v_and_b32 v%d, 1, v0' % t1); e('v_lshl_add_u32 v%d, v%d, 4, v%d' % (vgo, t1, t2))
    e('v_mul_u32_u24 v%d, 6144, v%d' % (t1, t1))
    e('v_lshl_add_u32 v%d, v%d, 2, v%d' % (vlw, t0, t1))
    e('s_lshl_b32 s27, s21, 5'); e('s_add_u32 s28, s27, 0x100000'); e('s_add_u32 s29, s27, 0x200000')
    e('s_lshr_b32 s22, s21, 4'); e('s_lshl_b32 s22, s22, 7'); e('s_and_b32 s23, s21, 15'); e('s_add_u32 s22, s22, s23')
    e('s_lshr_b32 s23, s20, 1'); e('s_lshl_b32 s23, s23, 4'); e('s_add_u32 s22, s22, s23')
    e('s_and_b32 s23, s20, 1'); e('s_lshl_b32 s23, s23, 6'); e('s_add_u32 s22, s22, s23')
    e('s_mul_i32 s24, s22, 1280'); e('s_add_u32 s25, s24, 40960')
    e('v_lshlrev_b32 v%d, 4, v%d' % (t0, vh))
    e('v_lshl_add_u32 v%d, v%d, 6, v%d' % (vxo, vi, t0))
    e('v_mov_b32 v%d, %s' % (vt, BIG))
    e('v_cmp_gt_u32 vcc, 20, v%d' % vi)
    e('v_cndmask_b32 v%d, v%d, v%d, vcc' % (vxo, vt, vxo))
    e('s_waitcnt lgkmcnt(0)')
    srd(k, 12, 6, T2_OFF, COLSZ)
    srd(k, 16, 4, 0, ROWSZ)
    srd(k, 32, 6, H_OFF, ROWSZ)
    srd(k, 36, 6, L2_OFF, ROWSZ)
    for it in range(3):
        e('buffer_load_dwordx4 %s, v%d, s[12:15], s%d offen' % (V(G + 4 * it, 4), vgo, 27 + it))
    for r in range(2):
        for g in range(2):
            e('buffer_load_dwordx4 %s, v%d, s[16:19], s%d offen offset:%d' % (V(X[r] + 4 * g, 4), vxo, 24 + r, 32 * g))
    vif = va(1); vhf = va(1); a1 = va(1); b1 = va(1)
    Bre = va(8, 4); Bim = va(8, 4); M3 = va(12, 4); tc = va(12); ts = va(12)
    e('v_cvt_f32_u32 v%d, v%d' % (vif, vi))
    e('v_cvt_f32_u32 v%d, v%d' % (vhf, vh))
    e('v_mul_f32 v%d, 4.0, v%d' % (vhf, vhf))
    e('v_mul_f32 v%d, %s, v%d' % (a1, fhex(1 / 32), vif))
    e('v_mul_f32 v%d, v%d, v%d' % (b1, a1, vhf))
    for ks in range(2):
        for u in range(4):
            angle(k, t0, a1, 8 * ks + u, b1)
            e('v_cos_f32 v%d, v%d' % (t1, t0)); e('v_sin_f32 v%d, v%d' % (t2, t0))
            e('v_cvt_pk_bf16_f32 v%d, v%d, -v%d' % (Bre + 4 * ks + u, t1, t2))
            e('v_cvt_pk_bf16_f32 v%d, v%d, v%d' % (Bim + 4 * ks + u, t2, t1))
    for it in range(3):
        e('s_waitcnt vmcnt(%d)' % (6 - it))
        e('ds_write2st64_b32 v%d, v%d, v%d offset0:%d offset1:%d' % (vlw, G + 4 * it, G + 4 * it + 1, 2 * it, 2 * it + 6))
        e('ds_write2st64_b32 v%d, v%d, v%d offset0:%d offset1:%d' % (vlw, G + 4 * it + 2, G + 4 * it + 3, 2 * it + 12, 2 * it + 18))
    e('v_mul_f32 v%d, %s, v%d' % (a1, fhex(1 / 640), vif))
    e('v_mul_f32 v%d, v%d, v%d' % (b1, a1, vhf))
    for r in range(12):
        angle(k, t0, a1, (r & 3) + 8 * (r >> 2), b1)
        e('v_cos_f32 v%d, v%d' % (tc + r, t0)); e('v_sin_f32 v%d, v%d' % (ts + r, t0))
    e('v_mul_f32 v%d, %s, v%d' % (a1, fhex(1 / 20), vif))
    e('v_mul_f32 v%d, v%d, v%d' % (b1, a1, vhf))
    for p in range(4):
        d0 = ((2 * p) & 3) + 8 * ((2 * p) >> 2)
        angle(k, t0, a1, d0, b1); angle(k, t1, a1, d0 + 1, b1)
        e('v_cos_f32 v%d, v%d' % (t2, t0)); e('v_cos_f32 v%d, v%d' % (t3, t1))
        e('v_sin_f32 v%d, v%d' % (t0, t0)); e('v_sin_f32 v%d, v%d' % (t1, t1))
        e('v_cvt_pk_bf16_f32 v%d, v%d, v%d' % (t2, t2, t3))
        e('v_cvt_pk_bf16_f32 v%d, -v%d, -v%d' % (t0, t0, t1))
        e('v_cndmask_b32 v%d, 0, v%d, vcc' % (M3 + p, t2))
        e('v_cndmask_b32 v%d, 0, v%d, vcc' % (M3 + 4 + p, t0))
    e('v_cmp_gt_u32 s[40:41], 20, v%d' % (vi) if False else 'v_and_b32 v%d, 63, v0' % vt)
    e('v_cmp_gt_u32 s[40:41], 20, v%d' % vt)
    e('v_mov_b32 v%d, 0x3f80' % t3)
    e('v_cndmask_b32 v%d, 0, v%d, vcc' % (M3 + 8, t3))
    for p in range(2):
        angle(k, t0, a1, 16 + 2 * p, b1); angle(k, t1, a1, 17 + 2 * p, b1)
        e('v_cos_f32 v%d, v%d' % (t2, t0)); e('v_cos_f32 v%d, v%d' % (t3, t1))
        e('v_sin_f32 v%d, v%d' % (t0, t0)); e('v_sin_f32 v%d, v%d' % (t1, t1))
        e('v_cvt_pk_bf16_f32 v%d, v%d, v%d' % (t2, t2, t3))
        e('v_cvt_pk_bf16_f32 v%d, -v%d, -v%d' % (t0, t0, t1))
        if p == 0: e('v_cndmask_b32 v%d, v%d, v%d, s[40:41]' % (M3 + 8, M3 + 8, t2))
        else: e('v_cndmask_b32 v%d, 0, v%d, s[40:41]' % (M3 + 9, t2))
        e('v_cndmask_b32 v%d, 0, v%d, s[40:41]' % (M3 + 10 + p, t0))
    vlr = va(1); vz = va(1); vsg = va(1)
    e('v_min_u32 v%d, 19, v%d' % (t0, vi))
    e('v_mul_u32_u24 v%d, 80, v%d' % (t1, vh))
    e('v_add_lshl_u32 v%d, v%d, v%d, 2' % (vlr, t0, t1))
    e('s_mul_i32 s26, s20, 3072')
    e('v_add_u32 v%d, s26, v%d' % (vlr, vlr))
    e('v_mov_b32 v%d, s26' % vz)
    e('v_lshlrev_b32 v%d, 31, v0' % vsg)
    e('v_cmp_eq_u32 vcc, 1, v%d' % vh)
    vlr2 = va(1)
    e('v_add_u32 v%d, 1536, v%d' % (vlr2, vlr))
    e('s_waitcnt lgkmcnt(0)')
    e('s_barrier')
    A = [va(8, 4), va(8, 4)]
    Z = va(2)
    e('ds_read2st64_b32 %s, v%d offset0:5 offset1:11' % (V(Z, 2), vz))
    for r in range(2):
        for ks in range(2):
            for u2 in range(2):
                o = 20 * (8 * ks + 2 * u2)
                e('ds_read2_b32 %s, v%d offset0:%d offset1:%d' % (V(A[r] + 4 * ks + 2 * u2, 2), vlr if r == 0 else vlr2, o, o + 20))
    Dre = [va(16, 4), va(16, 4)]; Dim = [va(16, 4), va(16, 4)]
    for r in range(2):
        for ks in range(2):
            e('s_waitcnt lgkmcnt(%d)' % (6 - 4 * r - 2 * ks))
            e('v_mfma_f32_32x32x16_bf16 %s, %s, %s, %s' % (V(Dre[r], 16), V(A[r] + 4 * ks, 4), V(Bre + 4 * ks, 4), '0' if ks == 0 else V(Dre[r], 16)))
            e('v_mfma_f32_32x32x16_bf16 %s, %s, %s, %s' % (V(Dim[r], 16), V(A[r] + 4 * ks, 4), V(Bim + 4 * ks, 4), '0' if ks == 0 else V(Dim[r], 16)))
    for r in range(2):
        e('v_lshlrev_b32 v%d, 16, v%d' % (Z + r, Z + r))
        e('v_xor_b32 v%d, v%d, v%d' % (Z + r, vsg, Z + r))
    e('s_waitcnt vmcnt(0)')
    for r in range(2):
        for g in range(2):
            e('v_permlane32_swap_b32 v%d, v%d' % (X[r] + 4 * g, X[r] + 4 * g + 2))
            e('v_permlane32_swap_b32 v%d, v%d' % (X[r] + 4 * g + 1, X[r] + 4 * g + 3))
    SL = [va(12, 4), va(12, 4)]
    Y = [va(16, 4), va(16, 4)]
    for r in range(2):
        for p in range(6):
            for z, (dr, di) in enumerate(((t0, t1), (t2, t3))):
                q = 2 * p + z
                e('v_mul_f32 v%d, v%d, v%d' % (dr, Dre[r] + q, tc + q))
                e('v_mul_f32 v%d, v%d, v%d' % (di, Dim[r] + q, tc + q))
                e('v_fma_f32 v%d, -v%d, v%d, v%d' % (dr, Dim[r] + q, ts + q, dr))
                e('v_fmac_f32 v%d, v%d, v%d' % (di, Dre[r] + q, ts + q))
            if p == 4:
                e('v_cndmask_b32 v%d, v%d, v%d, vcc' % (t0, t0, Z + r))
            if p < 4: dre, dim = SL[r] + p, SL[r] + 4 + p
            else: dre, dim = SL[r] + 8 + (p - 4), SL[r] + 10 + (p - 4)
            e('v_cvt_pk_bf16_f32 v%d, v%d, v%d' % (dre, t0, t2))
            e('v_cvt_pk_bf16_f32 v%d, v%d, v%d' % (dim, t1, t3))
        for s in range(3):
            e('v_mfma_f32_32x32x16_bf16 %s, %s, %s, %s' % (V(Y[r], 16), V(SL[r] + 4 * s, 4), V(M3 + 4 * s, 4), '0' if s == 0 else V(Y[r], 16)))
    HP = A
    st = va(4)
    for r in range(2):
        for p in range(8):
            y0, y1 = Y[r] + 2 * p, Y[r] + 2 * p + 1
            e('v_cvt_pk_bf16_f32 v%d, v%d, v%d' % (t0, y0, y1))
            e('v_lshlrev_b32 v%d, 16, v%d' % (t1, X[r] + p))
            e('v_and_b32 v%d, 0xffff0000, v%d' % (t2, X[r] + p))
            e('v_lshlrev_b32 v%d, 16, v%d' % (y0, t0))
            e('v_and_b32 v%d, 0xffff0000, v%d' % (y1, t0))
            e('v_add_f32 v%d, v%d, v%d' % (y0, y0, t1))
            e('v_add_f32 v%d, v%d, v%d' % (y1, y1, t2))
            e('v_cvt_pk_bf16_f32 v%d, v%d, v%d' % (HP[r] + p, y0, y1))
            e('v_lshlrev_b32 v%d, 16, v%d' % (y0, HP[r] + p))
            e('v_and_b32 v%d, 0xffff0000, v%d' % (y1, HP[r] + p))
            if p == 0:
                e('v_add_f32 v%d, v%d, v%d' % (st + 2 * r, y0, y1))
                e('v_mul_f32 v%d, v%d, v%d' % (st + 2 * r + 1, y0, y0))
            else:
                e('v_add_f32 v%d, v%d, v%d' % (st + 2 * r, st + 2 * r, y0))
                e('v_fmac_f32 v%d, v%d, v%d' % (st + 2 * r + 1, y0, y0))
                e('v_add_f32 v%d, v%d, v%d' % (st + 2 * r, st + 2 * r, y1))
            e('v_fmac_f32 v%d, v%d, v%d' % (st + 2 * r + 1, y1, y1))
    allreduce4(k, st, st + 1, st + 2, st + 3, 40)
    for r in range(2):
        for g in range(2):
            e('v_permlane32_swap_b32 v%d, v%d' % (HP[r] + 4 * g, HP[r] + 4 * g + 2))
            e('v_permlane32_swap_b32 v%d, v%d' % (HP[r] + 4 * g + 1, HP[r] + 4 * g + 3))
            e('buffer_store_dwordx4 %s, v%d, s[32:35], s%d offen offset:%d' % (V(HP[r] + 4 * g, 4), vxo, 24 + r, 32 * g))
    vm = va(2); vr = va(2)
    for r in range(2):
        ln_stats(k, 40 + 2 * r, 41 + 2 * r, vm + r, vr + r, t0, t1)
    for r in range(2):
        for p in range(8):
            ln_pair(k, X[r] + p, Y[r] + 2 * p, Y[r] + 2 * p + 1, vm + r, vr + r, t0, t1)
        for g in range(2):
            e('v_permlane32_swap_b32 v%d, v%d' % (X[r] + 4 * g, X[r] + 4 * g + 2))
            e('v_permlane32_swap_b32 v%d, v%d' % (X[r] + 4 * g + 1, X[r] + 4 * g + 3))
            e('buffer_store_dwordx4 %s, v%d, s[36:39], s%d offen offset:%d' % (V(X[r] + 4 * g, 4), vxo, 24 + r, 32 * g))
    k.label('k3_end')
    e('s_endpgm')
    return k, 256, 256, 12288
```

```python
from gen_common import *
import math

STG = 49152
NST = 10

def gen_k4():
    k = Kern('k4_kernel')
    e = k.e
    k.snext = 48
    va = k.valloc
    e('s_load_dwordx4 s[4:7], s[0:1], 32')
    e('s_load_dwordx2 s[8:9], s[0:1], 72')
    e('s_and_b32 s40, s2, 7'); e('s_lshr_b32 s41, s2, 3')
    e('s_and_b32 s42, s40, 1'); e('s_lshl_b32 s42, s42, 2'); e('s_and_b32 s43, s41, 3'); e('s_add_u32 s42, s42, s43')
    e('s_lshr_b32 s43, s40, 1'); e('s_mul_i32 s43, s43, 7'); e('s_lshr_b32 s44, s41, 2'); e('s_add_u32 s43, s43, s44')
    e('s_cmp_ge_u32 s2, 224'); e('s_cbranch_scc1 k4_end')
    e('s_cmp_ge_u32 s43, 27'); e('s_cbranch_scc1 k4_end')
    vl = va(1); t0 = va(1); t1 = va(1); t2 = va(1); t3 = va(1); vq = va(1)
    vgw = va(1); vgl = va(1)
    vA0 = va(1); vB0 = va(1); a0 = va(1); a1 = va(1); b0 = va(1); b1 = va(1); vst = va(1)
    acc = va(64, 4)
    FA = [va(16, 4), va(16, 4)]; FB = [va(16, 4), va(16, 4)]
    e('v_lshrrev_b32 v%d, 6, v0' % t0)
    e('v_and_b32 v%d, 63, v0' % vl)
    e('v_readfirstlane_b32 s28, v%d' % t0)
    e('v_lshrrev_b32 v%d, 4, v%d' % (vq, vl))
    e('v_lshrrev_b32 v%d, 3, v%d' % (t0, vl))
    e('v_and_b32 v%d, 7, v%d' % (t1, vl))
    e('v_xor_b32 v%d, v%d, v%d' % (t2, t1, t0))
    e('v_lshlrev_b32 v%d, 4, v%d' % (t2, t2))
    e('v_mul_u32_u24 v%d, 1280, v%d' % (t3, t0))
    e('v_add_u32 v%d, v%d, v%d' % (vgl, t2, t3))
    e('s_and_b32 s45, s28, 1'); e('s_lshl_b32 s45, s45, 2')
    e('v_and_b32 v%d, 2, v%d' % (t2, t0))
    e('v_or_b32 v%d, s45, v%d' % (t2, t2))
    e('v_xor_b32 v%d, v%d, v%d' % (t2, t1, t2))
    e('v_lshlrev_b32 v%d, 4, v%d' % (t2, t2))
    e('v_mul_u32_u24 v%d, 3456, v%d' % (t3, t0))
    e('v_add_u32 v%d, v%d, v%d' % (vgw, t2, t3))
    e('s_mul_i32 s29, s28, %d' % (8 * 3456)); e('s_lshl_b32 s45, s43, 7'); e('s_add_u32 s29, s29, s45')
    e('s_lshl_b32 s45, s42, 8'); e('s_lshl_b32 s46, s28, 5'); e('s_add_u32 s45, s45, s46'); e('s_mul_i32 s30, s45, 1280')
    for i in range(1, 4): e('s_add_u32 s%d, s30, %d' % (30 + i, 10240 * i))
    e('s_lshl_b32 s37, s28, 10')
    e('s_lshl_b32 s38, s28, 12'); e('s_add_u32 s38, s38, 16384')
    e('s_waitcnt lgkmcnt(0)')
    srd(k, 12, 4, 0, 640 * 3456)
    srd(k, 16, 6, 0, 640 * 3456)
    srd(k, 20, 8, L2_OFF, ROWSZ)
    srd(k, 24, 8, ACT_OFF, ACTSZ)
    def dma_ops(slot):
        ops = []
        def m0(base, add):
            if isinstance(slot, int):
                if slot + add: return ['s_add_u32 m0, s%d, %d' % (base, slot + add)]
                return ['s_mov_b32 m0, s%d' % base]
            if add == 0: return ['s_add_u32 m0, s%d, s%d' % (base, slot[0])]
            return ['s_add_u32 s47, s%d, %d' % (slot[0], add), 's_add_u32 m0, s%d, s47' % base]
        ops.append(m0(37, 0) + ['buffer_load_dwordx4 v%d, s[12:15], s29 offen lds' % vgw])
        ops.append(m0(37, 8192) + ['buffer_load_dwordx4 v%d, s[16:19], s29 offen lds' % vgw, 's_add_u32 s29, s29, %d' % (64 * 3456)])
        for i in range(4):
            ops.append(m0(38, 1024 * i) + ['buffer_load_dwordx4 v%d, s[20:23], s%d offen lds' % (vgl, 30 + i), 's_add_u32 s%d, s%d, 128' % (30 + i, 30 + i)])
        return ops
    for st in range(3):
        for op in dma_ops(st * STG):
            for x in op: e(x)
    e('v_and_b32 v%d, 3, v%d' % (t0, vl))
    e('v_lshrrev_b32 v%d, 1, v%d' % (t1, t0))
    e('v_xor_b32 v%d, v%d, v%d' % (t0, t0, t1))
    e('v_bfe_u32 v%d, v%d, 2, 2' % (t1, vl))
    e('v_lshl_add_u32 v%d, v%d, 3, v%d' % (t2, vq, t1))
    e('v_lshlrev_b32 v%d, 7, v%d' % (vA0, t2))
    e('v_and_b32 v%d, 2, v%d' % (t1, t1))
    e('v_and_b32 v%d, 1, v%d' % (t2, vq))
    e('v_lshl_or_b32 v%d, v%d, 2, v%d' % (t1, t2, t1))
    e('s_lshr_b32 s45, s28, 2'); e('s_lshl_b32 s45, s45, 2')
    e('v_lshrrev_b32 v%d, 1, v%d' % (t2, t0))
    e('v_or_b32 v%d, s45, v%d' % (t2, t2))
    e('v_xor_b32 v%d, v%d, v%d' % (t2, t2, t1))
    e('v_lshl_add_u32 v%d, v%d, 4, v%d' % (vA0, t2, vA0))
    e('v_and_b32 v%d, 1, v%d' % (t0, t0))
    e('v_lshl_add_u32 v%d, v%d, 3, v%d' % (vA0, t0, vA0))
    e('v_and_b32 v%d, 15, v%d' % (t0, vl))
    e('v_and_b32 v%d, 7, v%d' % (t1, vl))
    e('v_xor_b32 v%d, v%d, v%d' % (t1, t1, vq))
    e('v_lshlrev_b32 v%d, 4, v%d' % (t1, t1))
    e('v_lshl_add_u32 v%d, v%d, 7, v%d' % (vB0, t0, t1))
    e('s_and_b32 s46, s28, 3'); e('s_lshl_b32 s46, s46, 13')
    e('v_add_u32 v%d, s46, v%d' % (vB0, vB0))
    e('s_lshl_b32 s46, s42, 8'); e('s_and_b32 s47, s28, 3'); e('s_lshl_b32 s47, s47, 6'); e('s_add_u32 s46, s46, s47')
    e('s_mul_i32 s46, s46, 3456'); e('s_lshl_b32 s47, s43, 7'); e('s_add_u32 s46, s46, s47'); e('s_lshl_b32 s47, s45, 4'); e('s_add_u32 s39, s46, s47')
    e('v_mul_u32_u24 v%d, 3456, v%d' % (vst, t0))
    e('v_and_b32 v%d, 1, v%d' % (t1, vq)); e('v_lshl_add_u32 v%d, v%d, 5, v%d' % (vst, t1, vst))
    e('v_lshrrev_b32 v%d, 1, v%d' % (t1, vq)); e('v_lshl_add_u32 v%d, v%d, 4, v%d' % (vst, t1, vst))
    for i in range(64): e('v_mov_b32 v%d, 0' % (acc + i))
    e('v_mov_b32 v%d, v%d' % (a0, vA0)); e('v_xor_b32 v%d, 32, v%d' % (a1, vA0))
    e('v_mov_b32 v%d, v%d' % (b0, vB0)); e('v_xor_b32 v%d, 64, v%d' % (b1, vB0))
    e('s_mov_b32 s34, 0')
    e('s_mov_b32 s35, 0')
    def reads(ks):
        F = ks
        ops = []
        for nbx in range(4):
            ar = a0 if (nbx & 1) == 0 else a1
            for hf in range(2):
                ops.append('ds_read_b64_tr_b16 %s, v%d offset:%d' % (V(FA[F] + 4 * nbx + 2 * hf, 2), ar, (nbx >> 1) * 8192 + ks * 4096 + hf * 512))
            ops.append('ds_read_b128 %s, v%d offset:%d' % (V(FB[F] + 4 * nbx, 4), b0 if ks == 0 else b1, 16384 + nbx * 2048))
        return ops
    def mfmas(F):
        return ['v_mfma_f32_16x16x32_bf16 %s, %s, %s, %s' % (V(acc + 16 * mb + 4 * nbx, 4), V(FA[F] + 4 * nbx, 4), V(FB[F] + 4 * mb, 4), V(acc + 16 * mb + 4 * nbx, 4))
                for mb in range(4) for nbx in range(4)]
    e('s_waitcnt vmcnt(12)')
    e('s_barrier')
    for x in reads(0): e(x)
    k.label('k4_loop')
    e('s_waitcnt lgkmcnt(0)')
    rd = reads(1)
    for i, m in enumerate(mfmas(0)):
        e(m)
        if i < 12: e(rd[i])
        if i == 12:
            e('s_add_u32 s36, s34, %d' % STG); e('s_cmp_ge_u32 s36, %d' % (3 * STG)); e('s_cselect_b32 s36, 0, s36')
        if i == 13:
            e('v_add_u32 v%d, s36, v%d' % (a0, vA0)); e('v_add_u32 v%d, s36, v%d' % (b0, vB0))
        if i == 14:
            e('v_xor_b32 v%d, 32, v%d' % (a1, a0)); e('v_xor_b32 v%d, 64, v%d' % (b1, b0))
    e('s_cmp_lt_u32 s35, 8')
    e('s_waitcnt vmcnt(6) lgkmcnt(0)')
    e('s_cbranch_scc1 k4_w1')
    e('s_waitcnt vmcnt(0)')
    k.label('k4_w1')
    e('s_barrier')
    e('s_cmp_lt_u32 s35, 7')
    e('s_cbranch_scc0 k4_h2b')
    rd = reads(0)
    dm = dma_ops((34,))
    for i, m in enumerate(mfmas(1)):
        e(m)
        if i < 12: e(rd[i])
        if i >= 2 and i % 2 == 0 and (i - 2) // 2 < 6:
            for x in dm[(i - 2) // 2]: e(x)
    e('s_mov_b32 s34, s36')
    e('s_add_u32 s35, s35, 1')
    e('s_branch k4_loop')
    k.label('k4_h2b')
    for i, m in enumerate(mfmas(1)):
        e(m)
        if i < 12: e(rd[i])
    e('s_mov_b32 s34, s36')
    e('s_add_u32 s35, s35, 1')
    e('s_cmp_lt_u32 s35, %d' % NST)
    e('s_cbranch_scc1 k4_loop')
    e('s_waitcnt lgkmcnt(0)')
    c1 = -2.0 * math.log2(math.e) * math.sqrt(2.0 / math.pi)
    c2 = c1 * 0.044715
    e('v_mov_b32 v%d, %s' % (t0, fhex(c1)))
    e('s_mov_b32 s41, %s' % fhex(c2))
    e('s_mov_b32 s42, 0xffff0000')
    T = FA[0]
    for mb in range(4):
        O = FB[1] + 4 * mb if False else T + 32 + 4 * mb
        for nb in range(2):
            G = acc + 16 * mb + 4 * nb; U = acc + 16 * mb + 8 + 4 * nb
            for p in range(2):
                g0, g1, u0, u1 = G + 2 * p, G + 2 * p + 1, U + 2 * p, U + 2 * p + 1
                x0, x1, x2, x3 = T + 8 * ((2 * nb + p) & 3), T + 8 * ((2 * nb + p) & 3) + 1, T + 8 * ((2 * nb + p) & 3) + 2, T + 8 * ((2 * nb + p) & 3) + 3
                e('v_cvt_pk_bf16_f32 v%d, v%d, v%d' % (x0, g0, g1))
                e('v_cvt_pk_bf16_f32 v%d, v%d, v%d' % (x1, u0, u1))
                e('v_lshlrev_b32 v%d, 16, v%d' % (g0, x0)); e('v_and_b32 v%d, s42, v%d' % (g1, x0))
                e('v_lshlrev_b32 v%d, 16, v%d' % (u0, x1)); e('v_and_b32 v%d, s42, v%d' % (u1, x1))
                e('v_mul_f32 v%d, v%d, v%d' % (x0, g0, g0)); e('v_mul_f32 v%d, v%d, v%d' % (x1, g1, g1))
                e('v_fma_f32 v%d, v%d, s41, v%d' % (x0, x0, t0))
                e('v_fma_f32 v%d, v%d, s41, v%d' % (x1, x1, t0))
                e('v_mul_f32 v%d, v%d, v%d' % (x0, x0, g0)); e('v_mul_f32 v%d, v%d, v%d' % (x1, x1, g1))
                e('v_exp_f32 v%d, v%d' % (x0, x0)); e('v_exp_f32 v%d, v%d' % (x1, x1))
                e('v_add_f32 v%d, 1.0, v%d' % (x0, x0)); e('v_add_f32 v%d, 1.0, v%d' % (x1, x1))
                e('v_rcp_f32 v%d, v%d' % (x0, x0)); e('v_rcp_f32 v%d, v%d' % (x1, x1))
                e('v_mul_f32 v%d, v%d, v%d' % (x0, x0, g0)); e('v_mul_f32 v%d, v%d, v%d' % (x1, x1, g1))
                e('v_cvt_pk_bf16_f32 v%d, v%d, v%d' % (x0, x0, x1))
                e('v_lshlrev_b32 v%d, 16, v%d' % (x2, x0)); e('v_and_b32 v%d, s42, v%d' % (x3, x0))
                e('v_mul_f32 v%d, v%d, v%d' % (x2, x2, u0)); e('v_mul_f32 v%d, v%d, v%d' % (x3, x3, u1))
                e('v_cvt_pk_bf16_f32 v%d, v%d, v%d' % (O + 2 * nb + p, x2, x3))
        e('v_permlane16_swap_b32 v%d, v%d' % (O, O + 2))
        e('v_permlane16_swap_b32 v%d, v%d' % (O + 1, O + 3))
        if mb: e('s_add_u32 s39, s39, %d' % (16 * 3456))
        e('buffer_store_dwordx4 %s, v%d, s[24:27], s39 offen' % (V(O, 4), vst))
    k.label('k4_end')
    e('s_endpgm')
    return k, 224, 512, 3 * STG
```

```python
from gen_common import *

STG = 18432
NSL = 8
NST = 27
DUMMY = NSL * STG

def gen_k5():
    k = Kern('k5_kernel')
    e = k.e
    k.snext = 48
    va = k.valloc
    e('s_load_dwordx4 s[4:7], s[0:1], 48')
    e('s_load_dwordx2 s[8:9], s[0:1], 72')
    e('s_cmp_ge_u32 s2, 256'); e('s_cbranch_scc1 k5_end')
    e('s_and_b32 s40, s2, 7'); e('s_lshr_b32 s41, s2, 3')
    e('s_lshl_b32 s42, s40, 2'); e('s_and_b32 s43, s41, 3'); e('s_add_u32 s42, s42, s43')
    e('s_lshr_b32 s43, s41, 2')
    vl = va(1); t0 = va(1); t1 = va(1); t2 = va(1); t3 = va(1); vq = va(1)
    vga = va(1); vgw = va(3); vo = va(1)
    aA = va(3); aB = va(3); bb = va(3)
    Hh = va(10, 2)
    acc = va(40, 4)
    FA = [va(20, 4), va(20, 4)]; FB = [va(8, 4), va(8, 4)]
    e('v_lshrrev_b32 v%d, 6, v0' % t0)
    e('v_and_b32 v%d, 63, v0' % vl)
    e('v_readfirstlane_b32 s28, v%d' % t0)
    e('v_lshrrev_b32 v%d, 4, v%d' % (vq, vl))
    e('v_lshrrev_b32 v%d, 3, v%d' % (t0, vl)); e('v_and_b32 v%d, 7, v%d' % (t1, vl))
    e('v_xor_b32 v%d, v%d, v%d' % (t2, t1, t0)); e('v_lshlrev_b32 v%d, 4, v%d' % (t2, t2))
    e('v_mul_u32_u24 v%d, 3456, v%d' % (t3, t0)); e('v_add_u32 v%d, v%d, v%d' % (vga, t2, t3))
    for g in range(768): assert (g * 6554) >> 16 == g // 10
    e('s_movk_i32 s44, 6554')
    for i in range(3):
        e('v_add_u32 v%d, %d, v0' % (t0, 256 * i))
        e('v_mul_u32_u24 v%d, s44, v%d' % (t1, t0)); e('v_lshrrev_b32 v%d, 16, v%d' % (t1, t1))
        e('v_mul_u32_u24 v%d, 10, v%d' % (t2, t1)); e('v_sub_u32 v%d, v%d, v%d' % (t2, t0, t2))
        e('v_mul_u32_u24 v%d, 1280, v%d' % (t1, t1))
        e('v_lshl_add_u32 v%d, v%d, 4, v%d' % (vgw + i, t2, t1))
        if i == 2:
            e('v_mov_b32 v%d, %s' % (t1, BIG))
            e('v_cmp_gt_u32 vcc, 640, v%d' % t0)
            e('v_cndmask_b32 v%d, v%d, v%d, vcc' % (vgw + i, t1, vgw + i))
    e('s_lshl_b32 s45, s42, 6'); e('s_lshl_b32 s46, s28, 4'); e('s_add_u32 s45, s45, s46'); e('s_mul_i32 s30, s45, 3456')
    e('s_add_u32 s31, s30, %d' % (8 * 3456))
    e('s_mul_i32 s29, s43, 160')
    e('s_lshl_b32 s36, s28, 11')
    e('s_lshl_b32 s37, s28, 10'); e('s_add_u32 s37, s37, 8192')
    e('s_cmp_lt_u32 s28, 2'); e('s_cselect_b32 s38, 1, 0')
    e('s_and_b32 s45, s28, 1'); e('s_lshl_b32 s45, s45, 5'); e('s_lshr_b32 s46, s28, 1'); e('s_lshl_b32 s46, s46, 4'); e('s_add_u32 s45, s45, s46')
    e('s_lshl_b32 s46, s42, 6'); e('s_add_u32 s45, s45, s46'); e('s_mul_i32 s39, s45, 1280'); e('s_add_u32 s39, s39, s29')
    e('v_and_b32 v%d, 15, v%d' % (t0, vl)); e('v_mul_u32_u24 v%d, 1280, v%d' % (vo, t0)); e('v_lshl_add_u32 v%d, v%d, 3, v%d' % (vo, vq, vo))
    e('s_waitcnt lgkmcnt(0)')
    srd(k, 12, 4, 0, 1728 * 1280)
    srd(k, 16, 6, 0, ROWSZ)
    srd(k, 20, 8, ACT_OFF, ACTSZ)
    srd(k, 24, 8, H_OFF, ROWSZ)
    for nb in range(5):
        e('buffer_load_dwordx2 %s, v%d, s[24:27], s39 offen offset:%d' % (V(Hh + 2 * nb, 2), vo, 32 * nb))
    def dma_ops(st):
        slot = (st % NSL) * STG
        ops = []
        for i in range(2):
            ops.append(['s_add_u32 m0, s36, %d' % (slot + 1024 * i), 'buffer_load_dwordx4 v%d, s[20:23], s%d offen lds' % (vga, 30 + i), 's_add_u32 s%d, s%d, 128' % (30 + i, 30 + i)])
        for i in range(2):
            ops.append(['s_add_u32 m0, s37, %d' % (slot + 4096 * i), 'buffer_load_dwordx4 v%d, s[12:15], s29 offen lds' % (vgw + i)])
        ops.append(['s_add_u32 s47, s37, %d' % (slot + 8192), 's_cmp_lg_u32 s38, 0', 's_cselect_b32 m0, s47, %d' % DUMMY,
                    'buffer_load_dwordx4 v%d, s[12:15], s29 offen lds' % (vgw + 2), 's_add_u32 s29, s29, %d' % (64 * 1280)])
        return ops
    for st in range(NSL):
        for op in dma_ops(st):
            for x in op: e(x)
    e('s_lshr_b32 s45, s28, 1')
    e('s_and_b32 s46, s28, 1')
    e('v_and_b32 v%d, 3, v%d' % (t0, vl))
    e('v_bfe_u32 v%d, v%d, 2, 2' % (t1, vl))
    e('v_lshl_add_u32 v%d, v%d, 3, v%d' % (t1, vq, t1))
    e('s_lshl_b32 s47, s45, 5')
    e('v_add_u32 v%d, s47, v%d' % (t1, t1))
    e('v_and_b32 v%d, 1, v%d' % (t2, vq)); e('v_lshlrev_b32 v%d, 2, v%d' % (t2, t2))
    e('v_add_u32 v%d, v%d, v%d' % (t3, t1, t2))
    e('v_xor_b32 v%d, 4, v%d' % (t2, t2))
    e('v_add_u32 v%d, v%d, v%d' % (t2, t1, t2))
    e('v_mul_u32_u24 v%d, 160, v%d' % (t3, t3)); e('v_lshl_add_u32 v%d, v%d, 3, v%d' % (aA, t0, t3))
    e('v_mul_u32_u24 v%d, 160, v%d' % (t2, t2)); e('v_lshl_add_u32 v%d, v%d, 3, v%d' % (aB, t0, t2))
    e('v_and_b32 v%d, 15, v%d' % (t0, vl)); e('v_and_b32 v%d, 7, v%d' % (t1, vl))
    e('s_lshl_b32 s47, s45, 2')
    e('v_or_b32 v%d, s47, v%d' % (t2, vq))
    e('v_xor_b32 v%d, v%d, v%d' % (t1, t1, t2)); e('v_lshlrev_b32 v%d, 4, v%d' % (t1, t1))
    e('v_lshl_add_u32 v%d, v%d, 7, v%d' % (bb, t0, t1))
    e('s_lshl_b32 s47, s46, 12')
    e('v_add_u32 v%d, s47, v%d' % (bb, bb))
    for j in (1, 2):
        for r in (aA, aB, bb):
            e('v_add_u32 v%d, %d, v%d' % (r + j, 3 * STG * j, r))
    for i in range(40): e('v_mov_b32 v%d, 0' % (acc + i))
    def reads(st):
        F = st & 1
        sl = st % NSL
        j = sl // 3; off = (sl % 3) * STG
        ops = []
        for mb in range(2):
            ops.append('ds_read_b128 %s, v%d offset:%d' % (V(FB[F] + 4 * mb, 4), bb + j, off + 2048 * mb))
        for nb in range(5):
            ops.append('ds_read_b64_tr_b16 %s, v%d offset:%d' % (V(FA[F] + 4 * nb, 2), aA + j, off + 8192 + 32 * nb))
            ops.append('ds_read_b64_tr_b16 %s, v%d offset:%d' % (V(FA[F] + 4 * nb + 2, 2), aB + j, off + 8192 + 32 * nb))
        return ops
    def mfmas(F):
        return ['v_mfma_f32_16x16x32_bf16 %s, %s, %s, %s' % (V(acc + 20 * mb + 4 * nb, 4), V(FA[F] + 4 * nb, 4), V(FB[F] + 4 * mb, 4), V(acc + 20 * mb + 4 * nb, 4))
                for nb in range(5) for mb in range(2)]
    e('s_waitcnt vmcnt(%d)' % (5 * (NSL - 1)))
    e('s_barrier')
    for x in reads(0): e(x)
    for s in range(NST):
        if s < NST - 1:
            last = min(s + NSL - 1, NST - 1)
            e('s_waitcnt vmcnt(%d) lgkmcnt(0)' % (5 * (last - (s + 1))))
            e('s_barrier')
            extra = [[x] for x in reads(s + 1)]
            if s + NSL < NST:
                d = dma_ops(s + NSL)
                extra = extra + d
        else:
            e('s_waitcnt lgkmcnt(0)')
            extra = []
        ms = mfmas(s & 1)
        per = [[] for _ in ms]
        n = len(extra)
        for i, x in enumerate(extra):
            per[min(i * len(ms) // max(n, 1), len(ms) - 1)].append(x)
        for m, p in zip(ms, per):
            e(m)
            for x in p:
                for y in x: e(y)
    XB = 4 * STG
    vx = t0; vy = t1
    e('s_mul_i32 s47, s28, 5120'); e('s_add_u32 s47, s47, %d' % XB)
    e('v_lshlrev_b32 v%d, 4, v%d' % (t2, vl))
    e('v_add_u32 v%d, s47, v%d' % (vx, t2))
    e('s_xor_b32 s46, s28, 2'); e('s_mul_i32 s47, s46, 5120'); e('s_add_u32 s47, s47, %d' % XB)
    e('v_add_u32 v%d, s47, v%d' % (vy, t2))
    e('s_cmp_eq_u32 s45, 0')
    e('s_cbranch_scc1 k5_kh0')
    for nb in range(5):
        e('ds_write_b128 v%d, %s offset:%d' % (vx, V(acc + 4 * nb, 4), 1024 * nb))
    e('s_nop 1')
    for i in range(20): e('v_mov_b32 v%d, v%d' % (acc + i, acc + 20 + i))
    e('s_branch k5_red')
    k.label('k5_kh0')
    k.fence()
    for nb in range(5):
        e('ds_write_b128 v%d, %s offset:%d' % (vx, V(acc + 20 + 4 * nb, 4), 1024 * nb))
    k.label('k5_red')
    e('s_waitcnt lgkmcnt(0)')
    e('s_barrier')
    P = FA[0]
    for nb in range(5):
        e('ds_read_b128 %s, v%d offset:%d' % (V(P + 4 * nb, 4), vy, 1024 * nb))
    e('s_mov_b32 s42, 0xffff0000')
    for nb in range(5):
        e('s_waitcnt lgkmcnt(%d)' % (4 - nb))
        for p in range(2):
            a0, a1 = acc + 4 * nb + 2 * p, acc + 4 * nb + 2 * p + 1
            hh = Hh + 2 * nb + p
            e('v_add_f32 v%d, v%d, v%d' % (a0, a0, P + 4 * nb + 2 * p)); e('v_add_f32 v%d, v%d, v%d' % (a1, a1, P + 4 * nb + 2 * p + 1))
            e('v_cvt_pk_bf16_f32 v%d, v%d, v%d' % (t2, a0, a1))
            e('v_lshlrev_b32 v%d, 16, v%d' % (a0, t2)); e('v_and_b32 v%d, s42, v%d' % (a1, t2))
            e('v_lshlrev_b32 v%d, 16, v%d' % (t2, hh)); e('v_and_b32 v%d, s42, v%d' % (t3, hh))
            e('v_add_f32 v%d, v%d, v%d' % (a0, a0, t2)); e('v_add_f32 v%d, v%d, v%d' % (a1, a1, t3))
            e('v_cvt_pk_bf16_f32 v%d, v%d, v%d' % (hh, a0, a1))
        e('buffer_store_dwordx2 %s, v%d, s[16:19], s39 offen offset:%d' % (V(Hh + 2 * nb, 2), vo, 32 * nb))
    k.label('k5_end')
    e('s_endpgm')
    return k, 256, 256, DUMMY + 1024
```

```python
import sys
from gen_k1 import gen_k1
from gen_k2 import gen_k2
from gen_k3 import gen_k3
gens = [gen_k1, gen_k2, gen_k3]
try:
    from gen_k4 import gen_k4
    gens.append(gen_k4)
    from gen_k5 import gen_k5
    gens.append(gen_k5)
except ImportError:
    pass
out = sys.argv[1] if len(sys.argv) > 1 else 'sequential_preLN__spectral_gfnet__geglu_ffn__prompt.s'
ref = open('sequential_preLN__spectral_gfnet__geglu_ffn__prompt.s.ref').read().split('\n')
head = [l for l in ref if l.startswith(';') and '@launch grid' not in l]
ks = [g() for g in gens]
s = '\n'.join(head) + '\n'
for k, grid, block, lds in ks:
    s += '; @launch kernel=%s grid=(%d,1,1) block=(%d,1,1) lds=%d\n' % (k.name, grid, block, lds)
s += '.amdgcn_target "amdgcn-amd-amdhsa--gfx950"\n.text\n'
kds = ''
for k, grid, block, lds in ks:
    code, kd = k.text(agprs=getattr(k, 'agprs', 0))
    s += code
    kds += '.p2align 6\n' + kd
    print(k.name, 'vgprs', k.vmax, 'lines', len(k.lines))
s += '.section .rodata,"a"\n' + kds
open(out, 'w').write(s)
```
